```python
import torch

def _softmax(x, axis=-1):
    return torch.softmax(x, dim=axis)

def _gelu(x):
    return torch.nn.functional.gelu(x, approximate='tanh')

def _silu(x):
    return torch.nn.functional.silu(x)

def _sigmoid(x):
    return torch.sigmoid(x)

def _layernorm(x, axis=-1, eps=1e-05):
    m = x.mean(dim=axis, keepdim=True)
    v = x.var(dim=axis, keepdim=True, unbiased=False)
    return (x - m) / torch.sqrt(v + eps)

def _scatter_add(tgt, idx, src, axis=0):
    return tgt.clone().index_add_(axis, idx, src)

def _segment_sum(src, seg, n):
    out = torch.zeros((n,) + src.shape[1:], dtype=src.dtype)
    return out.index_add_(0, seg, src)

def _pad(x, pw):
    flat = tuple((v for pair in reversed(pw) for v in pair))
    return torch.nn.functional.pad(x, flat)
kernel_name = 'gated_mix__memory_aug_recurrent_mem_tr__mixer_channel_mlp__prompt'

def setup_inputs():

    _w = lambda a: (lambda t: t.to(torch.bfloat16) if t.is_floating_point() else t)(torch.as_tensor(a))

    def _A_setup():
        B, S, Dm = (1, 2048, 1024)
        H, Dh = (32, 128)
        M, seg = (8, 32)
        seg = min(seg, S)
        S = S // seg * seg
        return {'x': _w((lambda *s: torch.randn(*s, dtype=torch.bfloat16) * 0.05)(B, S, Dm)), 'mem0': _w((lambda *s: torch.randn(*s, dtype=torch.bfloat16) * 0.8)(B, M, Dm)), 'Wq': _w((lambda *s: torch.randn(*s, dtype=torch.bfloat16) * 3.2)(Dm, H, Dh) * Dm ** (-0.5)), 'Wk': _w((lambda *s: torch.randn(*s, dtype=torch.bfloat16) * 3.2)(Dm, H, Dh) * Dm ** (-0.5)), 'Wv': _w((lambda *s: torch.randn(*s, dtype=torch.bfloat16) * 0.8)(Dm, H, Dh) * Dm ** (-0.5)), 'Wo': _w((lambda *s: torch.randn(*s, dtype=torch.bfloat16) * 0.8)(H, Dh, Dm) * (H * Dh) ** (-0.5)), 'seg_len': seg}
    _A_in = _A_setup()

    def _B_setup():
        B, S, D, F = (1, 2048, 1024, 3584)
        return {'x': _w((lambda *s: torch.randn(*s, dtype=torch.bfloat16) * 0.05)(B, S, D)), 'w1': _w((lambda *s: torch.randn(*s, dtype=torch.bfloat16) * 1.6)(D, F) * D ** (-0.5)), 'b1': _w((lambda *s: torch.randn(*s, dtype=torch.bfloat16) * 0.8)(F)), 'w2': _w((lambda *s: torch.randn(*s, dtype=torch.bfloat16) * 0.05)(F, D) * F ** (-0.5)), 'b2': _w((lambda *s: torch.randn(*s, dtype=torch.bfloat16) * 0.05)(D))}
    _B_in = _B_setup()
    return {'A_x': _A_in['x'], 'A_mem0': _A_in['mem0'], 'A_Wq': _A_in['Wq'], 'A_Wk': _A_in['Wk'], 'A_Wv': _A_in['Wv'], 'A_Wo': _A_in['Wo'], 'A_seg_len': _A_in['seg_len'], 'B_x': _B_in['x'], 'B_w1': _B_in['w1'], 'B_b1': _B_in['b1'], 'B_w2': _B_in['w2'], 'B_b2': _B_in['b2'], 'gate_w': _w((lambda *s: torch.randn(*s, dtype=torch.bfloat16) * 0.05)(1024) * 16.0)}

def reference(A_x, A_mem0, A_Wq, A_Wk, A_Wv, A_Wo, A_seg_len, B_x, B_w1, B_b1, B_w2, B_b2, gate_w):

    def _A_ref(x, mem0, Wq, Wk, Wv, Wo, seg_len):
        B, S, Dm = x.shape
        H, Dh = (Wq.shape[1], Wq.shape[2])
        M = mem0.shape[1]
        scale = Dh ** (-0.5)
        n_seg = S // seg_len
        L = M + seg_len
        idx = torch.arange(L)
        mask = (idx[:, None] < M) | (idx[:, None] >= idx[None, :])
        mem = mem0
        outs = []
        for s in range(n_seg):
            xs = x[:, s * seg_len:(s + 1) * seg_len, :].clone()
            h = torch.concatenate([mem, xs], axis=1)
            q = torch.einsum('btd,dhe->bhte', h, Wq)
            k = torch.einsum('btd,dhe->bhte', h, Wk)
            v = torch.einsum('btd,dhe->bhte', h, Wv)
            scores = torch.einsum('bhqe,bhke->bhqk', q, k) * scale
            scores = torch.where(mask[None, None], scores, -1000000000.0)
            p = _softmax(scores, axis=-1)
            o = torch.einsum('bhqk,bhke->bhqe', p, v)
            o = torch.einsum('bhte,hed->btd', o, Wo)
            mem = o[:, :M, :].clone()
            outs.append(o[:, M:, :])
        return torch.concatenate(outs, axis=1)

    def _B_ref(x, w1, b1, w2, b2):
        y = _layernorm(x, axis=-1)
        h = _gelu(torch.einsum('bsd,df->bsf', y, w1) + b1)
        return torch.einsum('bsf,fd->bsd', h, w2) + b2
    x = A_x
    g = _sigmoid((x * gate_w).sum(-1, keepdims=True))
    a = _A_ref(x, A_mem0, A_Wq, A_Wk, A_Wv, A_Wo, A_seg_len)
    b = _B_ref(x, B_w1, B_b1, B_w2, B_b2)
    return g * a + (1 - g) * b
```

```python
MB = 1 << 20
KX, VT, QX, OX, HH, YY, BB, KM, VM, GG, RING = 0, 16*MB, 32*MB, 48*MB, 64*MB, 80*MB, 84*MB, 88*MB, 92*MB, 96*MB, 97*MB
SLOT = 512*1024
R_MEMB, R_OB, R_PB, R_SCB = 0, 98304, 196608, 327680
class A:
    def __init__(self): self.l = []; self.n = 0
    def __call__(self, s):
        for x in s.strip().split("\n"):
            x = x.strip()
            if x: self.l.append(x if x.endswith(":") else "  " + x)
    def lab(self, p="L"):
        self.n += 1; return f"{p}_{self.n}"
    def text(self): return "\n".join(self.l) + "\n"
def vr(b, n=4, k="v"): return f"{k}[{b}:{b+n-1}]" if n > 1 else f"{k}{b}"
def ar(b, n=4): return vr(b, n, "a")
def srd(a, d, off, nbytes):
    a(f"s_load_dwordx2 s[{d}:{d+1}], s[0:1], {off}\n s_mov_b32 s{d+2}, {nbytes}\n s_mov_b32 s{d+3}, 0x00020000")
def khead(name): return f".globl {name}\n.p2align 8\n.type {name},@function\n{name}:\n"
def kdesc(name, vg, acc):
    return f""".p2align 6
.amdhsa_kernel {name}
  .amdhsa_next_free_vgpr {vg}
  .amdhsa_next_free_sgpr 102
  .amdhsa_accum_offset {acc}
  .amdhsa_group_segment_fixed_size 0
  .amdhsa_kernarg_size 128
  .amdhsa_user_sgpr_count 2
  .amdhsa_user_sgpr_kernarg_segment_ptr 1
  .amdhsa_system_sgpr_workgroup_id_x 1
.end_amdhsa_kernel
"""
```

```python
from asm import *
XF = lambda s, m: 32 + 64*s + 4*m
WF = lambda s, n: 64 + 64*s + 4*n
class G:
    def __init__(g, TM, TN, NS, lda, ldb, K, swap=False, xsc=""):
        g.TM, g.TN, g.NS, g.lda, g.ldb, g.K, g.swap, g.xsc = TM, TN, NS, lda, ldb, K, swap, xsc
        g.MT, g.NT = TM//32, TN//32
        g.XS, g.WS = TM*128, TN*128
        g.WB = NS*g.XS
        g.nd = g.MT + g.NT
    def acc(g, mt, nt): return (mt*g.NT + nt)*4
    def setup(g, a):
        TM, TN = g.TM, g.TN; rb = TN*2; cpr = TN//8; L = cpr.bit_length()-1; rpi = 64//cpr
        a(f"""s_lshr_b32 s56, s14, 1
        s_and_b32 s57, s14, 1
        s_lshl_b32 s55, s14, 10
        v_and_b32 v28, 15, v1
        v_lshrrev_b32 v29, 4, v1
        v_lshrrev_b32 v30, 1, v28
        v_xor_b32 v30, v29, v30
        v_lshlrev_b32 v30, 4, v30
        v_lshl_add_u32 v2, v28, 7, v30
        s_mul_i32 s58, s56, {TM*64}
        v_add_u32 v2, s58, v2
        v_xor_b32 v3, 64, v2
        v_bfe_u32 v30, v1, 2, 2
        v_lshl_add_u32 v31, v29, 3, v30
        v_mul_u32_u24 v31, {rb}, v31
        v_and_b32 v160, 3, v1
        v_lshl_add_u32 v31, v160, 3, v31
        v_add_u32 v31, {g.WB}, v31
        v_and_b32 v160, 1, v29""")
        if TN == 64: a("v_lshrrev_b32 v30, 1, v30\n v_lshl_add_u32 v30, v160, 1, v30")
        else: a("v_lshl_add_u32 v30, v160, 2, v30")
        a(f"s_mul_i32 s58, s57, {g.NT}")
        for t in range(g.NT):
            a(f"v_xor_b32 v160, s58, v30\n v_lshl_add_u32 v{4+t}, v160, 5, v31\n s_add_u32 s58, s58, 1")
        a(f"""s_lshl_b32 s58, s57, 2
        v_or_b32 v30, s58, v29
        v_and_b32 v31, 7, v1
        v_xor_b32 v30, v30, v31
        v_lshrrev_b32 v31, 3, v1
        s_lshl_b32 s58, s14, 3
        v_add_u32 v31, s58, v31
        v_mul_u32_u24 v31, {g.lda}, v31
        v_lshl_add_u32 v12, v30, 4, v31""")
        for j in range(1, g.MT): a(f"v_add_u32 v{12+j}, {j*32*g.lda}, v12")
        a(f"s_mul_i32 s58, s14, {rpi}\n v_lshrrev_b32 v30, {L}, v1\n v_add_u32 v30, s58, v30\n v_and_b32 v31, {cpr-1}, v1")
        for j in range(g.NT):
            a(f"v_add_u32 v160, {4*j*rpi}, v30\n v_bfe_u32 v161, v160, 3, 1")
            if TN == 64: a("v_bfe_u32 v162, v160, 1, 1\n v_lshl_add_u32 v161, v161, 1, v162")
            else: a("v_and_b32 v162, 3, v160\n v_lshl_add_u32 v161, v161, 2, v162")
            a(f"""v_lshlrev_b32 v161, 1, v161
            v_xor_b32 v161, v161, v31
            v_mul_u32_u24 v160, {g.ldb}, v160
            v_lshl_add_u32 v{20+j}, v161, 4, v160""")
    def dmas(g, st):
        r = []
        for j in range(max(g.MT, g.NT)):
            if j < g.MT: r.append((f"s_add_u32 m0, s55, {st*g.XS+j*4096}", f"buffer_load_dwordx4 v{12+j}, s[44:47], s52 offen {g.xsc} lds"))
            if j < g.NT: r.append((f"s_add_u32 m0, s55, {g.WB+st*g.WS+j*4096}", f"buffer_load_dwordx4 v{20+j}, s[48:51], s53 offen lds"))
        return r
    def adv(g): return f"s_add_u32 s52, s52, 128\n s_add_u32 s53, s53, {64*g.ldb}"
    def reads(g, st, kk, s):
        r = []; rb = g.TN*2
        for j in range(max(g.MT, g.NT)):
            if j < g.NT:
                for u in range(2): r.append(f"ds_read_b64_tr_b16 {vr(WF(s,j)+2*u,2)}, v{4+j} offset:{st*g.WS+(32*kk+4*u)*rb}")
            if j < g.MT: r.append(f"ds_read_b128 {vr(XF(s,j))}, v{2+kk} offset:{st*g.XS+j*2048}")
        return r
    def kstep(g, a, s, pre, post):
        n = 0
        for mt in range(g.MT):
            for nt in range(g.NT):
                for x in pre.get(n, []): a(x)
                d = ar(g.acc(mt, nt)); x, w = vr(XF(s, mt)), vr(WF(s, nt))
                a(f"v_mfma_f32_16x16x32_bf16 {d}, {x if g.swap else w}, {w if g.swap else x}, {d}")
                for x in post.get(n, []): a(x)
                n += 1
        a("s_waitcnt lgkmcnt(0)")
    def spread(g, items, lo, hi):
        pre, post = {}, {}; busy = set()
        for i, it in enumerate(items):
            k = lo + i*(hi-lo)//len(items)
            if isinstance(it, tuple):
                if k in busy: post[k] += [it[0], "s_nop 0", it[1]]
                else: pre.setdefault(k, []).append(it[0]); post.setdefault(k, []).append(it[1]); busy.add(k)
            else: post.setdefault(k, []).append(it)
        return pre, post
    def prologue(g, a, pre=None):
        a("s_waitcnt vmcnt(0) lgkmcnt(0)\n s_barrier")
        if pre: pre()
        for st in range(g.NS):
            for m, d in g.dmas(st): a(m + "\n s_nop 0\n" + d)
            a(g.adv())
    def main(g, a, init=None):
        n = g.MT*g.NT
        for mt in range(g.MT):
            for nt in range(g.NT):
                for v in range(4): a(f"v_accvgpr_write_b32 a{g.acc(mt,nt)+v}, {init(mt,nt,v) if init else 0}")
        a(f"s_waitcnt vmcnt({(g.NS-1)*g.nd})\n s_barrier")
        for r in g.reads(0, 0, 0): a(r)
        top = a.lab("gl")
        a(f"s_mov_b32 s54, {g.K//64//g.NS}\n s_waitcnt lgkmcnt(0)\n {top}:")
        a("s_cmp_eq_u32 s54, 1\n s_cselect_b32 s46, 0, s46\n s_cselect_b32 s50, 0, s50")
        for st in range(g.NS):
            pre, post = g.spread(g.reads(st, 1, 1), 0, max(1, n*3//4))
            g.kstep(a, 0, pre, post)
            rd = g.reads((st+1) % g.NS, 0, 0); dm = g.dmas(st); it = []
            while rd or dm:
                if rd: it.append(rd.pop(0))
                if dm: it.append(dm.pop(0))
                if rd and len(rd) > len(dm): it.append(rd.pop(0))
            b = 1 if n > 4 else 0
            pre, post = g.spread(it, b+1, max(b+2, n*7//8))
            post.setdefault(b, []).insert(0, f"s_waitcnt vmcnt({(g.NS-2)*g.nd})\n s_barrier")
            post.setdefault(n-1, []).append(g.adv())
            g.kstep(a, 1, pre, post)
        a(f"s_sub_u32 s54, s54, 1\n s_cmp_lg_u32 s54, 0\n s_cbranch_scc1 {top}\n s_nop 7")
    def rd8(g, a, T, a0, a1):
        for v in range(4): a(f"v_accvgpr_read_b32 v{T+v}, a{a0+v}")
        for v in range(4): a(f"v_accvgpr_read_b32 v{T+4+v}, a{a1+v}")
    def pack(g, a, D, T):
        for i in range(4): a(f"v_cvt_pk_bf16_f32 v{D+i}, v{T+2*i}, v{T+2*i+1}")
        a(f"s_nop 0\n v_permlane16_swap_b32 v{D}, v{D+2}\n v_permlane16_swap_b32 v{D+1}, v{D+3}")
    def coff(g, a, d):
        a(f"v_and_b32 v{d}, 1, v29\n v_lshlrev_b32 v{d}, 5, v{d}\n v_lshrrev_b32 v160, 1, v29\n v_lshl_add_u32 v{d}, v160, 4, v{d}")
    def rowaddr(g, a, d, ldc):
        g.coff(a, d)
        a(f"""s_mul_i32 s58, s56, {g.TM//2*ldc}
        s_mul_i32 s59, s57, {g.TN}
        s_add_u32 s58, s58, s59
        v_mul_u32_u24 v160, {ldc}, v28
        v_add3_u32 v{d}, v{d}, v160, s58""")
    def store_rows(g, a, ldc, sbase, sr, fl, fn=None):
        g.rowaddr(a, 30, ldc); k = 0
        for mt in range(g.MT):
            for p in range(g.NT//2):
                T = 32 + 8*(k % 2); D = 64 + 4*(k % 8); k += 1
                g.rd8(a, T, g.acc(mt, 2*p), g.acc(mt, 2*p+1))
                if fn: fn(a, T, mt, p)
                g.pack(a, D, T)
                a(f"buffer_store_dwordx4 {vr(D)}, v30, {sr}, s{sbase} offen offset:{p*64} {fl}")
            a(f"s_add_u32 s{sbase}, s{sbase}, {16*ldc}")
    def store_vt(g, a, sbase, fl):
        g.coff(a, 30)
        a(f"""s_mul_i32 s58, s56, {g.TM//64*262144}
        s_mul_i32 s59, s57, {g.TN//2*64}
        s_add_u32 s58, s58, s59
        v_lshl_add_u32 v30, v28, 6, v30
        v_add_u32 v30, s58, v30
        v_add_u32 v31, 4096, v30"""); k = 0
        for p in range(g.MT//2):
            for nt in range(g.NT):
                T = 32 + 8*(k % 2); D = 64 + 4*(k % 8); k += 1
                g.rd8(a, T, g.acc(2*p, nt), g.acc(2*p+1, nt)); g.pack(a, D, T)
                a(f"buffer_store_dwordx4 {vr(D)}, v{30+nt//4}, s[4:7], s{sbase} offen offset:{(nt%4)*1024} {fl}")
            a(f"s_add_u32 s{sbase}, s{sbase}, 262144")
    def bias(g, a, koff, nbytes, scol):
        srd(a, 8, koff, nbytes)
        a(f"s_mul_i32 s58, s57, {g.TN}\n s_add_u32 s58, s58, s{scol}\n v_lshlrev_b32 v160, 3, v29\n s_waitcnt lgkmcnt(0)")
        for nt in range(g.NT): a(f"buffer_load_dwordx2 {vr(176+2*nt,2)}, v160, s[8:11], s58 offen offset:{nt*32}")
    def bias2(g, a):
        a(f"s_waitcnt vmcnt({g.NS*g.nd})")
        for nt in range(g.NT):
            for h in range(2): a(f"v_lshlrev_b32 v{192+4*nt+2*h}, 16, v{176+2*nt+h}\n v_and_b32 v{193+4*nt+2*h}, 0xffff0000, v{176+2*nt+h}")
        return lambda mt, nt, v: f"v{192+4*nt+v}"
```

```python
from asm import *
import work
L_QK, L_V, L_WO = 0, 16384, 24576
B, BS, ACC, ACV = 16, 32, 48, 64
vG, vLW, vT, vSent = 2, 3, 4, 8
SCALE = 0x3e0293ee
DPPR = "row_ror:8 row_mask:0xf bank_mask:0xf"
P = dict(rep=0, atom=0, skew=0, gap=12, pb16=1, adv=1, pbD=1, pbG=24, scD=2, scG=24, d_mem=40, d_ob=40, d_sc=10, d_pb=170, timing=False)

def delay(a, n):
    while n > 0:
        k = min(n, 16); a(f"s_nop {k-1}"); n -= k

def weights(a, ready):
    a("""s_lshl_b32 s30, s14, 15
    v_lshrrev_b32 v12, 2, v1
    v_and_b32 v13, 3, v1
    v_lshlrev_b32 v13, 4, v13
    v_lshrrev_b32 v14, 4, v1
    v_lshlrev_b32 v14, 9, v14
    v_and_b32 v15, 3, v12
    v_lshl_add_u32 v14, v15, 6, v14
    v_add3_u32 v14, v14, v13, s30
    v_lshl_add_u32 v15, v12, 13, v13
    v_lshl_add_u32 v13, v12, 11, v13
    s_lshl_b32 s31, s14, 21
    s_lshl_b32 s32, s12, 11
    s_lshl_b32 s33, s13, 6
    s_add_u32 s31, s31, s32
    s_add_u32 s31, s31, s33
    s_lshl_b32 s32, s12, 21
    s_lshl_b32 s34, s14, 19
    s_add_u32 s32, s32, s34
    s_add_u32 s32, s32, s33""")
    def dma(koff, half, vo, sbase, rstep):
        srd(a, 8, koff, 8*MB)
        a(f"s_add_u32 s35, s30, {half*16384}\n s_mov_b32 s36, s{sbase}\n s_waitcnt lgkmcnt(0)")
        for i in range(16):
            a(f"s_mov_b32 m0, s35\n s_add_u32 s35, s35, 1024\n buffer_load_dwordx4 v{vo}, s[8:11], s36 offen lds\n s_add_u32 s36, s36, {rstep}")
    def tr(half, abase, astr):
        for ks in range(8):
            for t in range(2):
                for u in range(2):
                    d = abase + ks*astr + t*4 + 2*u
                    a(f"ds_read_b64_tr_b16 {ar(d,2)}, v14 offset:{half*16384 + ks*2048 + u*256 + t*8}")
            if ks % 2 == 1: a("s_waitcnt lgkmcnt(0)")
    dma(16, 0, 15, 31, 16*8192); dma(24, 1, 15, 31, 16*8192)
    a("s_waitcnt vmcnt(16)"); ready(); tr(0, 0, 16)
    dma(32, 0, 15, 31, 16*8192)
    a("s_waitcnt vmcnt(16)"); tr(1, 8, 16)
    dma(40, 1, 13, 32, 16*2048)
    a("s_waitcnt vmcnt(16)"); tr(0, 128, 8)
    a("s_waitcnt vmcnt(0)"); tr(1, 192, 8)

def tmo(a):
    a("s_sub_u32 s23, s23, 1\n s_cbranch_scc1 rec_exit")

def gather(a, soff, tiles, abase, astr, acc, S, s0, shadow=None, soff2=None):
    ld = lambda t, so: a(f"buffer_load_dwordx4 {vr(B+4*t)}, v{vG}, s[4:7], s{so} offen offset:{t*1024} sc1")
    for t in range(4):
        ld(t, soff)
        if t < 3: delay(a, P['gap'])
    if shadow: shadow()
    cont = [a.lab("cont") for _ in range(4)]; ret = [a.lab("ret") for _ in range(4)]
    def c1(t):
        b = B+4*t
        a(f"s_waitcnt vmcnt({3-t})\n v_max3_u32 v{vT}, v{b}, v{b+1}, v{b+2}")
    def c2(t): a(f"v_max_u32 v{vT}, v{vT}, v{B+4*t+3}\n v_cmp_eq_u32 vcc, -1, v{vT}")
    def c3(t): a(f"s_cbranch_vccnz {ret[t]}\n {cont[t]}:")
    def mf(ks, i, src):
        c = "0" if ks == 0 else vr(acc+4*i)
        a(f"v_mfma_f32_16x16x32_bf16 {vr(acc+4*i)}, {ar(abase+ks*astr+4*i)}, {vr(src)}, {c}")
    dpp = lambda t, ks: [a(f"v_mov_b32_dpp v{BS+4*t+k}, v{B+4*t+k} {DPPR}") for k in ks]
    c1(0); c2(0); c3(0); S(s0)
    for t in range(4):
        b = B+4*t; bs = BS+4*t; n = t < 3
        if tiles == 4:
            mf(2*t,0,b); dpp(t,(0,1)); mf(2*t,1,b); dpp(t,(2,3)); mf(2*t,2,b); mf(2*t,3,b)
            mf(2*t+1,0,bs)
            if n: c1(t+1)
            mf(2*t+1,2,bs)
            if n: c2(t+1)
            mf(2*t+1,1,bs); mf(2*t+1,3,bs)
        else:
            mf(2*t,0,b); dpp(t,(0,1,2,3)); mf(2*t,1,b)
            if n: c1(t+1); c2(t+1)
            else: a("s_nop 0")
            mf(2*t+1,0,bs); mf(2*t+1,1,bs)
        if n: c3(t+1)
        if t == 2: S(s0+1)
    def tail():
        for t in range(4):
            a(f"{ret[t]}:"); tmo(a)
            for u in range(t, 4): ld(u, soff2 or soff)
            c1(t); c2(t)
            a(f"s_cbranch_vccnz {ret[t]}\n s_branch {cont[t]}")
    return tail

def compact(a, d, s_):
    for i in range(4): a(f"v_mov_b32_dpp v{d+i}, v{s_+i} row_ror:8 row_mask:0xf bank_mask:0xc")

def ppoll(a, D, gap, n, issue, check, done, base, stride):
    top = a.lab("pp"); end = a.lab("ppe"); dn = [a.lab("ppd") for _ in range(D)]
    for d in range(D):
        issue(base+d*stride)
        if d < D-1: delay(a, gap)
    a(f"{top}:")
    for d in range(D):
        check(base+d*stride, (D-1)*n)
        a(f"s_cbranch_vccz {dn[d]}")
        issue(base+d*stride)
    tmo(a); a(f"s_branch {top}")
    for d in range(D):
        a(f"{dn[d]}:"); done(base+d*stride)
        if d < D-1: a(f"s_branch {end}")
    a(f"{end}:")

def vproj(a):
    for ks in range(8):
        src = (B if ks % 2 == 0 else BS) + 4*(ks//2)
        for i in range(2):
            c = "0" if ks == 0 else vr(ACV+4*i)
            a(f"v_mfma_f32_16x16x32_bf16 {vr(ACV+4*i)}, {ar(128+ks*8+4*i)}, {vr(src)}, {c}")
    a("s_nop 7"); compact(a, ACV, ACV+4); a(f"ds_write_b128 v5, {vr(ACV)} offset:{L_V}")

NST = 15
def stamp(a, i):
    if P["timing"]: a(f"s_memtime s[{50+2*i}:{51+2*i}]")
def stamp_acc(a, used):
    if not P["timing"]: return
    a("s_waitcnt lgkmcnt(0)")
    for p, q in zip(used[:-1], used[1:]):
        a(f"s_sub_u32 s48, s{50+2*q}, s{50+2*p}\n s_add_u32 s{80+q}, s{80+q}, s48")
def pkadd(a, d, x, y, n):
    for i in range(0, n, 2): a(f"v_pk_add_f32 {vr(d+i,2)}, {vr(x+i,2)}, {vr(y+i,2)}")

def setup(a):
    a(f"""v_and_b32 v12, 7, v1
    v_bfe_u32 v13, v1, 3, 1
    v_lshrrev_b32 v14, 4, v1
    v_and_b32 v15, 15, v1
    v_lshlrev_b32 v{vG}, 4, v12
    v_lshl_add_u32 v{vG}, v14, 7, v{vG}
    v_mov_b32 v6, v{vG}
    v_lshl_add_u32 v{vG}, v13, 9, v{vG}
    s_lshl_b32 s30, s12, 14
    s_lshl_b32 s31, s14, 12
    s_mul_i32 s30, s12, {16384+4*P['skew']}
    s_mul_i32 s32, s14, {4096+P['skew']}
    s_add_u32 s32, s30, s32
    v_add_u32 v{vG}, s32, v{vG}
    v_lshlrev_b32 v{vLW}, 4, v1
    v_mov_b32 v7, v{vLW}
    s_lshl_b32 s32, s14, 11
    v_add_u32 v5, s32, v{vLW}
    v_add_u32 v{vLW}, s31, v{vLW}
    v_mov_b32 v8, -1
    v_mov_b32 v9, -1
    v_mov_b32 v10, -1
    v_mov_b32 v11, -1
    s_mov_b32 s24, 0x00ff00ff
    s_mov_b32 s25, 0x00ff00ff
    s_mov_b32 s26, 0xff00ff00
    s_mov_b32 s27, 0xff00ff00
    s_mov_b32 s28, 0
    s_mov_b32 s29, 0x00ff00ff
    s_mov_b32 s15, 0
    s_mov_b32 s23, 0x40000
    s_lshl_b32 s33, s12, 5
    s_add_u32 s33, s33, s13
    s_lshl_b32 s34, s13, 9
    s_add_u32 s34, s34, s30
    s_lshr_b32 s32, s13, 3
    s_mul_i32 s32, s32, {P['skew']}
    s_add_u32 s34, s34, s32
    v_lshrrev_b32 v100, 2, v15
    v_and_b32 v101, 3, v15
    v_lshl_add_u32 v102, v100, 3, v101""")

def rotate(a):
    a(f"""s_mov_b32 s35, s16
    s_mov_b32 s16, s17
    s_mov_b32 s17, s18
    s_mov_b32 s18, s19
    s_mov_b32 s19, s35
    s_add_u32 s35, s16, {R_OB}""")

def wave_loop(a, w, st, xs):
    tails = []
    top = a.lab("top"); fin = a.lab("fin")
    KA, VA = 72, 72
    if w == 0:
        a(f"""v_lshlrev_b32 v80, 11, v13
        v_lshl_add_u32 v80, v14, 8, v80
        v_lshl_add_u32 v80, v12, 4, v80
        s_lshl_b32 s30, s33, 6
        v_lshlrev_b32 v81, 13, v102
        v_lshl_add_u32 v81, v14, 4, v81
        v_add_u32 v81, s30, v81
        v_add_u32 v82, 32768, v81
        s_mul_i32 s31, s33, 1280
        s_add_u32 s31, s31, {R_SCB}
        v_add_u32 v83, s31, v7
        s_add_u32 s31, s31, {1024-256}
        v_add_u32 v84, s31, v6
        v_lshlrev_b32 v85, 13, v12
        v_lshl_add_u32 v85, v14, 4, v85
        v_add_u32 v85, s30, v85
        s_mov_b32 s20, {KX}
        s_mov_b32 s22, {KM}
        buffer_load_dwordx4 {vr(KA)}, v81, s[4:7], s20 offen sc1
        buffer_load_dwordx4 {vr(KA+4)}, v82, s[4:7], s20 offen sc1""")
    if w == 1:
        a(f"""s_and_b32 s31, s33, 0xfc
        s_mul_i32 s31, s31, 1280
        s_add_u32 s31, s31, {R_SCB}
        v_add_u32 v80, s31, v7
        v_add_u32 v81, 4096, v80
        v_lshrrev_b32 v82, 1, v14
        v_lshlrev_b32 v82, 7, v82
        v_lshl_add_u32 v82, v12, 4, v82
        v_and_b32 v83, 1, v14
        v_lshl_add_u32 v83, v83, 1, v13
        v_lshl_add_u32 v82, v83, 2, v82
        s_add_u32 s31, s31, 1024
        v_add_u32 v82, s31, v82
        v_add_u32 v83, 4096, v82
        v_lshlrev_b32 v84, 8, v100
        v_lshl_add_u32 v84, v14, 5, v84
        v_lshl_add_u32 v84, v101, 2, v84
        v_add_u32 v84, {L_V}, v84
        s_lshl_b32 s30, s33, 5
        v_add_u32 v86, s30, v102
        v_lshlrev_b32 v85, 6, v86
        v_lshl_add_u32 v85, v14, 4, v85
        v_lshlrev_b32 v86, 4, v86
        v_lshl_add_u32 v86, v14, 2, v86
        s_add_u32 s30, s34, {R_OB}
        v_add_u32 v87, s30, v6
        v_mov_b32 v88, 0x3f803f80
        v_mov_b32 v89, 0x3f803f80
        v_mov_b32 v90, 0x3f803f80
        v_mov_b32 v91, 0x3f803f80
        v_mov_b32 v93, 0
        v_mov_b32 v95, 0
        v_mov_b32 v97, 0
        s_mov_b32 s20, {VT}
        s_mov_b32 s22, {VM}
        s_mov_b32 s21, {SCALE}
        buffer_load_dwordx4 {vr(VA)}, v85, s[4:7], s20 offen sc1
        buffer_load_dwordx4 {vr(VA+4)}, v85, s[4:7], s20 offen offset:256 sc1""")
        for j in range(1, 8): a(f"v_add_u32 v{104+j}, {(j>>1)*2048+(j&1)*128}, v84")
        a("v_mov_b32 v104, v84")
    if w >= 2:
        a(f"""v_lshlrev_b32 v80, 10, v13
        v_lshl_add_u32 v80, v14, 8, v80
        v_lshl_add_u32 v80, v12, 4, v80
        s_lshl_b32 s30, s13, 12
        s_add_u32 s30, s30, {R_PB}
        v_lshl_add_u32 v82, v13, 3, v6
        v_add_u32 v82, s30, v82
        s_lshl_b32 s31, s12, 10
        v_add_u32 v81, s31, v82
        v_xor_b32 v85, 1024, v81
        v_xor_b32 v86, 2048, v81
        v_xor_b32 v87, 3072, v81
        v_xor_b32 v88, 520, v85
        v_xor_b32 v89, 520, v86
        v_xor_b32 v90, 520, v87
        v_mul_u32_u24 v91, 504, v13
        v_add_u32 v81, v81, v91
        v_lshl_add_u32 v83, v13, 3, v6
        v_add_u32 v83, s34, v83""")
    if w == 3: a("s_mov_b32 s20, s38")
    if w == 2:
        srd(a, 8, 8, 16384)
        a(f"""
        v_lshlrev_b32 v84, 11, v12
        v_lshl_add_u32 v84, v14, 4, v84
        v_lshl_add_u32 v84, v13, 3, v84
        s_lshl_b32 s30, s13, 6
        s_mov_b32 s16, {RING}
        s_waitcnt lgkmcnt(0)
        buffer_load_dwordx2 v[72:73], v84, s[8:11], s30 offen
        s_waitcnt vmcnt(0)
        v_min_u32 v72, -2, v72
        v_min_u32 v73, -2, v73
        buffer_store_dwordx2 v[72:73], v83, s[4:7], s16 offen {st}""")
    if P["timing"]:
        a("s_memtime s[44:45]")
        for i in range(NST): a(f"s_mov_b32 s{80+i}, 0")
    used = []
    def S(i): stamp(a, i); used.append(i)
    for i in range(4): a(f"s_mov_b32 s{16+i}, {RING+((i+3)&3)*SLOT}")
    a(f"{top}:"); S(0)
    tails.append(gather(a, 17, 4, 0, 16, ACC, S, 11, lambda: rotate(a), 16))
    S(1); a("s_nop 5"); compact(a, ACC, ACC+8)
    if w: a(f"ds_write_b128 v5, {vr(ACC)} offset:{L_QK}")
    compact(a, ACC+4, ACC+12)
    if w: a(f"ds_write_b128 v5, {vr(ACC+4)} offset:{L_QK+1024}\n s_waitcnt lgkmcnt(0)")
    a("s_barrier"); S(2)
    if w == 0:
        R = 112
        for ww in range(1, 4):
            for t in range(2): a(f"ds_read_b128 {vr(R+ww*8+4*t)}, v7 offset:{L_QK+ww*2048+t*1024}")
        a("s_waitcnt lgkmcnt(4)"); pkadd(a, R, ACC, R+8, 8)
        a("s_waitcnt lgkmcnt(2)"); pkadd(a, R, R, R+16, 8)
        a("s_waitcnt lgkmcnt(0)"); pkadd(a, R, R, R+24, 8)
        for i in range(4): a(f"v_cvt_pk_bf16_f32 v{96+i}, v{R+2*i}, v{R+2*i+1}")
        a(f"""s_nop 1
        v_mfma_f32_16x16x32_bf16 v[148:151], {vr(KA+4)}, v[96:99], 0
        v_mfma_f32_16x16x32_bf16 v[144:147], {vr(KA)}, v[96:99], 0
        v_mfma_f32_16x16x32_bf16 v[152:155], v[96:99], v[96:99], 0
        s_nop 6""")
        for i in range(4): a(f"v_mov_b32_dpp v{144+i}, v{148+i} row_ror:8 row_mask:0xf bank_mask:0xc")
        a(f"""buffer_store_dwordx4 v[144:147], v83, s[4:7], s16 offen {st}
        s_mov_b64 exec, s[28:29]
        buffer_store_dwordx4 v[152:155], v84, s[4:7], s16 offen {st}
        s_mov_b64 exec, -1""")
    if w == 0: S(3)
    vproj(a); S(4)
    def vred():
        for j in range(8): a(f"ds_read2_b32 {vr(112+2*j,2)}, v{104+j} offset1:4")
    def vred2():
        a("s_waitcnt lgkmcnt(0)")
        pkadd(a, 112, 112, 116, 4); pkadd(a, 120, 120, 124, 4); pkadd(a, 112, 112, 120, 4)
        a("v_cvt_pk_bf16_f32 v92, v112, v113\n v_cvt_pk_bf16_f32 v94, v114, v115")
    def vmst():
        a(f"buffer_store_dword v92, v86, s[4:7], s22 offen {xs}\n buffer_store_dword v94, v86, s[4:7], s22 offen offset:64 {xs}")
    if w == 1:
        pl = a.lab("pl"); X = 128; M = 144
        a(f"s_cmp_eq_u32 s15, 63\n s_cbranch_scc1 {fin}")
        delay(a, P["d_sc"])
        def iss(b):
            for p in range(4):
                a(f"buffer_load_dwordx4 {vr(b+4*p)}, v80, s[4:7], s16 offen offset:{p*1280} sc1")
                a(f"buffer_load_dword v{b+16+p}, v82, s[4:7], s16 offen offset:{p*1280} sc1")
        def chk(b, o):
            for p in range(4):
                a(f"s_waitcnt vmcnt({o+6-2*p})")
                if p == 0: a(f"v_max3_u32 v{vT}, v{b}, v{b+1}, v{b+16}")
                else: a(f"v_max3_u32 v{vT}, v{b+4*p}, v{b+4*p+1}, v{vT}\n v_max_u32 v{vT}, v{b+16+p}, v{vT}")
                a(f"v_max3_u32 v{vT}, v{b+4*p+2}, v{b+4*p+3}, v{vT}")
                if p == 1: pkadd(a, X, b, b+4, 4); a(f"v_add_f32 v{M}, v{b+16}, v{b+17}")
                if p > 1: pkadd(a, X, X, b+4*p, 4); a(f"v_add_f32 v{M}, v{M}, v{b+16+p}")
            a(f"v_cmp_eq_u32 vcc, -1, v{vT}")
        ppoll(a, P["scD"], P["scG"], 8, iss, chk, lambda b: None, 168, 20)
        a(f"""
        s_waitcnt lgkmcnt(0)
        s_barrier"""); S(5)
        a(f"""v_max3_f32 v150, v{X}, v{X+1}, v{X+2}
        v_max3_f32 v150, v{X+3}, v{M}, v150""")
        vred()
        a(f"""v_max_f32_dpp v150, v150, v150 {DPPR}
        v_mov_b32 v151, v150
        s_nop 1
        v_permlane16_swap_b32 v150, v151
        s_nop 0
        v_max_f32 v150, v150, v151
        v_mov_b32 v151, v150
        s_nop 1
        v_permlane32_swap_b32 v150, v151
        s_nop 0
        v_max_f32 v150, v150, v151
        v_mul_f32 v150, s21, v150""")
        for i in (M, X, X+1, X+2, X+3): a(f"v_fma_f32 v{i}, v{i}, s21, -v150")
        for i in (M, X, X+1, X+2, X+3): a(f"v_exp_f32 v{i}, v{i}")
        a(f"""v_mov_b32_dpp v151, v{M} {DPPR}
        v_cvt_pk_bf16_f32 v152, v{X}, v{X+1}
        v_cvt_pk_bf16_f32 v153, v{X+2}, v{X+3}
        v_cvt_pk_bf16_f32 v96, v{M}, v151
        v_mov_b32_dpp v154, v152 {DPPR}
        v_mov_b32_dpp v155, v153 {DPPR}
        s_nop 1
        v_mfma_f32_16x16x32_bf16 v[156:159], v[88:91], v[152:155], 0
        v_mfma_f32_16x16x32_bf16 v[160:163], {vr(VA)}, v[152:155], 0
        v_mfma_f32_16x16x32_bf16 v[164:167], {vr(VA+4)}, v[152:155], 0""")
        vred2()
        a(f"""v_mfma_f32_16x16x16_bf16 v[156:159], v[88:89], v[96:97], v[156:159]
        s_nop 0
        v_mfma_f32_16x16x16_bf16 v[160:163], v[92:93], v[96:97], v[160:163]
        v_mfma_f32_16x16x16_bf16 v[164:167], v[94:95], v[96:97], v[164:167]
        s_nop 4
        v_rcp_f32 v156, v156
        s_nop 1""")
        for i in range(4): a(f"v_pk_mul_f32 {vr(160+2*i,2)}, {vr(160+2*i,2)}, v[156:157] op_sel_hi:[1,0]")
        for i in range(4): a(f"v_cvt_pk_bf16_f32 v{152+i}, v{160+2*i}, v{161+2*i}")
        a(f"""s_mov_b64 exec, s[24:25]
        buffer_store_dwordx4 v[152:155], v87, s[4:7], s16 offen {st}
        s_mov_b64 exec, -1
        s_barrier""")
    else:
        a(f"s_waitcnt lgkmcnt(0)\n s_barrier\n s_cmp_eq_u32 s15, 63\n s_cbranch_scc1 {fin}")
        if w == 3:
            a(f"""s_mov_b64 exec, s[24:25]
            buffer_store_dwordx4 v[8:11], v83, s[4:7], s19 offen {st}
            s_mov_b64 exec, -1""")
        a("s_barrier")
    S(6); delay(a, P["d_ob"])
    tails.append(gather(a, 35, 2, 192, 8, ACC, S, 13))
    S(7)
    a("s_nop 7"); compact(a, ACC, ACC+4)
    if w != 2: a(f"ds_write_b128 v5, {vr(ACC)} offset:{L_WO}\n s_waitcnt lgkmcnt(0)")
    a("s_barrier"); S(8)
    if w == 0:
        a(f"""s_add_u32 s20, s20, {32*8192*P['adv']}
        buffer_load_dwordx4 {vr(KA)}, v81, s[4:7], s20 offen sc1
        buffer_load_dwordx4 {vr(KA+4)}, v82, s[4:7], s20 offen sc1
        buffer_store_dwordx4 v[8:11], v83, s[4:7], s18 offen {st}
        s_mov_b64 exec, s[28:29]
        buffer_store_dwordx4 v[8:11], v84, s[4:7], s18 offen {st}
        s_mov_b64 exec, s[26:27]
        buffer_store_dwordx4 v[96:99], v85, s[4:7], s22 offen {xs}
        s_add_u32 s22, s22, {65536*P['adv']}
        s_mov_b64 exec, -1""")
    if w == 1:
        a(f"""s_add_u32 s20, s20, {4096*64*P['adv']}
        buffer_load_dwordx4 {vr(VA)}, v85, s[4:7], s20 offen sc1
        buffer_load_dwordx4 {vr(VA+4)}, v85, s[4:7], s20 offen offset:256 sc1""")
        vmst()
        a(f"""s_add_u32 s22, s22, {65536*P['adv']}
        s_mov_b64 exec, s[24:25]
        buffer_store_dwordx4 v[8:11], v87, s[4:7], s18 offen {st}
        s_mov_b64 exec, -1""")
    if w == 2:
        R = 112; pl = a.lab("pl")
        for j, ww in enumerate((0, 1, 3)): a(f"ds_read_b128 {vr(R+4*j)}, v7 offset:{L_WO+ww*2048}")
        a("s_waitcnt lgkmcnt(2)"); pkadd(a, 128, ACC, R, 4)
        a("s_waitcnt lgkmcnt(0)"); pkadd(a, R+4, R+4, R+8, 4); pkadd(a, 128, 128, R+4, 4)
        a(f"""v_cvt_pk_bf16_f32 v132, v128, v129
        v_cvt_pk_bf16_f32 v133, v130, v131
        s_nop 0
        v_mov_b32_dpp v134, v132 {DPPR}
        v_mov_b32_dpp v135, v133 {DPPR}
        s_mov_b64 exec, {'-1' if P['rep'] else 's[24:25]'}
        buffer_store_dwordx4 v[132:135], v81, s[4:7], s16 offen sc1
        buffer_store_dwordx4 v[8:11], v81, s[4:7], s18 offen sc1
        s_mov_b64 exec, -1""")
        S(9); delay(a, P["d_pb"])
        def iss(b):
            for p in range(3):
                if P['atom']: a(f"v_mov_b32 v{b+2*p}, 0\n v_mov_b32 v{b+2*p+1}, 0\n buffer_atomic_or_x2 {vr(b+2*p,2)}, v{85+p}, s[4:7], s16 offen sc0 sc1")
                else: a(f"buffer_load_dwordx2 {vr(b+2*p,2)}, v{85+p+3*P['rep']*(((b-136)//12)&1)}, s[4:7], s16 offen sc1")
        def chk(b, o):
            for p in range(3):
                a(f"s_waitcnt vmcnt({o+2-p})")
                if p == 0: a(f"v_max_u32 v{vT}, v{b}, v{b+1}")
                else: a(f"v_max3_u32 v{vT}, v{b+2*p}, v{b+2*p+1}, v{vT}")
                if p == 2: a(f"v_cmp_eq_u32 vcc, -1, v{vT}")
                a(f"""v_lshlrev_b32 v120, 16, v{b+2*p}
                v_and_b32 v121, 0xffff0000, v{b+2*p}
                v_lshlrev_b32 v122, 16, v{b+2*p+1}
                v_and_b32 v123, 0xffff0000, v{b+2*p+1}""")
                pkadd(a, R, 128 if p == 0 else R, 120, 4)
            a(f"""v_cvt_pk_bf16_f32 v72, v{R}, v{R+1}
            v_cvt_pk_bf16_f32 v73, v{R+2}, v{R+3}""")
        ppoll(a, P["pbD"], P["pbG"], 3, iss, chk, lambda b: None, 136, 12)
        a(f"buffer_store_dwordx2 v[72:73], v83, s[4:7], s17 offen {st}")
    if w == 3:
        l = a.lab("kv")
        a(f"""v_mov_b32 v72, s15
        s_mov_b64 exec, 1
        buffer_store_dword v72, v7, s[4:7], s20 offen sc1
        s_mov_b64 exec, -1
        s_and_b32 s30, s15, 7
        s_cmp_lg_u32 s30, 6
        s_cbranch_scc1 {l}_ok
        s_cmp_eq_u32 s15, 62
        s_cbranch_scc1 {l}_ok
        s_add_u32 s30, s15, 2
        s_lshr_b32 s30, s30, 1
        v_mov_b32 v73, s30
        {l}:""")
        tmo(a)
        a(f"""buffer_load_dword v72, v73, s[40:43], 0 offen offset:64 sc1
        s_waitcnt vmcnt(0)
        v_cmp_gt_u32 vcc, 128, v72
        s_cbranch_vccnz {l}
        {l}_ok:""")
    a("s_barrier\n s_add_u32 s15, s15, 1"); S(10); stamp_acc(a, used)
    delay(a, P["d_mem"])
    a(f"s_branch {top}")
    for t in tails: t()
    a(f"{fin}:")
    if w == 1:
        a("s_waitcnt lgkmcnt(0)\n s_barrier"); vred(); vred2(); vmst()
    if w == 0: a(f"s_mov_b64 exec, s[26:27]\n buffer_store_dwordx4 v[96:99], v85, s[4:7], s22 offen {xs}\n s_mov_b64 exec, -1")
    a("s_waitcnt vmcnt(0)\n s_barrier")
    if w == 2: work.wstamp(a, 2)
    if w == 3: a("v_mov_b32 v72, 64\n s_mov_b64 exec, 1\n buffer_store_dword v72, v7, s[4:7], s20 offen sc1\n s_mov_b64 exec, -1")
    if P["timing"]:
        a(f"s_lshl_b32 s48, s33, 8\n s_add_u32 s48, s48, {GG+65536+w*64}\n v_mov_b32 v22, 0")
        for i in range(NST): a(f"v_mov_b32 v20, s{80+i}\n buffer_store_dword v20, v22, s[4:7], s48 offen offset:{4*i}\n s_nop 1")
        a(f"v_mov_b32 v20, s23\n buffer_store_dword v20, v22, s[4:7], s48 offen offset:60\n s_nop 1")
    if P["timing"] and w == 0:
        a("""s_memtime s[46:47]
        s_waitcnt lgkmcnt(0)
        s_sub_u32 s46, s46, s44
        v_mov_b32 v20, s46
        v_mov_b32 v21, s23
        v_mov_b32 v22, 240
        s_cmp_eq_u32 s33, 0
        s_cbranch_scc0 rec_exit
        buffer_store_dwordx2 v[20:21], v22, s[40:43], 0 offen""")
    a("s_branch rec_exit")

def rec(a, xs="sc1"):
    a(f"""v_lshlrev_b32 v2, 4, v0
    v_mov_b32 v8, -1
    v_mov_b32 v9, -1
    v_mov_b32 v10, -1
    v_mov_b32 v11, -1
    v_mov_b32 v3, 0
    s_lshl_b32 s30, s3, 14
    s_add_u32 s30, s30, {RING}
    s_lshr_b32 s38, s3, 2
    s_lshl_b32 s38, s38, 7
    s_and_b32 s31, s3, 3
    s_lshl_b32 s31, s31, 2
    s_add_u32 s38, s38, s31
    s_add_u32 s38, s38, {GG+16384}""")
    for i in range(4): a("buffer_store_dwordx4 v[8:11], v2, s[4:7], s30 offen sc1\n s_add_u32 s30, s30, 4096")
    a("s_mov_b64 exec, 1\n buffer_store_dword v3, v3, s[4:7], s38 offen sc1\n s_mov_b64 exec, -1")
    def ready():
        a("""s_barrier
        s_cmp_lg_u32 s14, 0
        s_cbranch_scc1 rdy_done
        v_mov_b32 v4, 1
        s_mov_b64 exec, 1
        buffer_atomic_add v4, v3, s[40:43], 0 offen offset:36 sc1
        s_mov_b64 exec, -1
        s_waitcnt vmcnt(16)
        rdy_done:""")
    weights(a, ready)
    work.wstamp(a, 0)
    setup(a)
    wl = a.lab("wl")
    a(f"""v_mov_b32 v20, 0
    {wl}:""")
    tmo(a)
    a(f"""buffer_load_dword v24, v20, s[40:43], 0 offen offset:36 sc1
    buffer_load_dword v25, v20, s[40:43], 0 offen offset:64 sc1
    s_waitcnt vmcnt(0)
    v_min_u32 v24, v24, v25
    v_cmp_gt_u32 vcc, 128, v24
    s_cbranch_vccz {wl}_ok
    s_sleep 4
    s_branch {wl}
    {wl}_ok:
    buffer_load_dword v24, v20, s[40:43], 0 offen offset:32 sc1
    s_waitcnt vmcnt(0)
    v_readfirstlane_b32 s30, v24
    s_barrier""")
    work.wstamp(a, 1)
    a("""s_cmp_lg_u32 s30, 0
    s_cbranch_scc1 rec_slow""")
    for mode, st in (("fast", ""), ("slow", "sc1")):
        a(f"rec_{mode}:")
        for w in (1, 2, 3): a(f"s_cmp_eq_u32 s14, {w}\n s_cbranch_scc1 rec_{mode}{w}")
        for w in range(4):
            a(f"rec_{mode}{w}:"); wave_loop(a, w, st, xs)
    a("rec_exit:\n s_waitcnt vmcnt(0)\n s_endpgm")

def roles(a):
    srd(a, 4, 120, 256*MB); srd(a, 40, 112, 256)
    a("""v_and_b32 v1, 63, v0
    v_lshrrev_b32 v2, 6, v0
    s_nop 0
    v_readfirstlane_b32 s14, v2
    v_mov_b32 v3, 0
    s_getreg_b32 s12, hwreg(HW_REG_XCC_ID, 0, 4)
    s_waitcnt lgkmcnt(0)
    s_cmp_lg_u32 s14, 0
    s_cbranch_scc1 role_wait
    s_mov_b64 exec, 1""")
    def atom(off):
        a(f"""v_mov_b32 v4, 1
        v_mov_b32 v5, {off}
        buffer_atomic_add v4, v5, s[40:43], 0 offen sc0 sc1
        s_waitcnt vmcnt(0)
        v_readfirstlane_b32 s13, v4""")
    a("s_and_b32 s12, s12, 7\n s_lshl_b32 s30, s12, 2")
    atom("s30")
    a("""s_lshl_b32 s3, s12, 5
    s_add_u32 s3, s3, s13
    s_cmp_lt_u32 s13, 32
    s_cbranch_scc1 role_done
    buffer_load_dwordx4 v[8:11], v3, s[40:43], 0 offen sc1
    buffer_load_dwordx4 v[12:15], v3, s[40:43], 0 offen offset:16 sc1
    s_waitcnt vmcnt(0)
    v_min3_u32 v8, v8, v9, v10
    v_min3_u32 v8, v8, v11, v12
    v_min3_u32 v8, v8, v13, v14
    v_min_u32 v8, v8, v15
    s_nop 0
    v_readfirstlane_b32 s30, v8
    s_mov_b32 s3, 256
    s_cmp_ge_u32 s30, 32
    s_cbranch_scc1 role_done""")
    atom(32)
    for x in range(8):
        atom(4*x)
        a(f"s_add_u32 s3, s13, {32*x}\n s_cmp_lt_u32 s13, 32\n s_cbranch_scc1 role_done")
    a("""s_mov_b32 s3, 256
    role_done:
    v_mov_b32 v4, s3
    ds_write_b32 v3, v4
    s_mov_b64 exec, -1
    s_waitcnt lgkmcnt(0)
    role_wait:
    s_barrier
    ds_read_b32 v4, v3
    s_waitcnt lgkmcnt(0)
    v_readfirstlane_b32 s3, v4
    s_barrier
    s_cmp_ge_u32 s3, 256
    s_cbranch_scc1 rec_exit
    s_lshr_b32 s12, s3, 5
    s_and_b32 s13, s3, 31""")
```

```python
from asm import *
from gemm import G
import struct, math
f2u = lambda x: hex(struct.unpack('I', struct.pack('f', x))[0])
PROG = GG + 16384
C_KV, C_Y, C_H, C_O = 64, 96, 128, 160
SCALE = 0x3e0293ee
NWO = 6
W = dict(timing=False)
def wstamp(a, i):
    if W["timing"]:
        a(f"""s_memrealtime s[98:99]
        s_lshl_b32 s97, s3, 7
        s_add_u32 s97, s97, {GG+131072+4*i}
        s_waitcnt lgkmcnt(0)
        v_mov_b32 v160, s98
        v_mov_b32 v161, 0
        buffer_store_dword v160, v161, s[4:7], s97 offen""")
def signal(a, base, sblk, val):
    l = a.lab("sg")
    a(f"""s_waitcnt vmcnt(0)
    s_barrier
    s_cmp_lg_u32 s14, 0
    s_cbranch_scc1 {l}
    s_lshl_b32 s58, {sblk}, 2
    v_mov_b32 v160, {val}
    v_mov_b32 v161, s58
    s_mov_b64 exec, 1
    buffer_atomic_add v160, v161, s[40:43], 0 offen offset:{base} sc1
    s_mov_b64 exec, -1
    {l}:""")
def wait(a, base, sblk, n):
    l = a.lab("wt"); e = a.lab("we")
    a(f"""s_cmp_lg_u32 s14, 0
    s_cbranch_scc1 {e}
    s_lshl_b32 s58, {sblk}, 2
    v_mov_b32 v161, s58
    {l}:
    s_sub_u32 s23, s23, 1
    s_cbranch_scc1 rec_exit
    buffer_load_dword v160, v161, s[40:43], 0 offen offset:{base} sc1
    s_waitcnt vmcnt(0)
    v_cmp_gt_u32 vcc, {n}, v160
    s_cbranch_vccz {l}_ok
    s_sleep 8
    s_branch {l}
    {l}_ok:
    buffer_inv sc1
    s_waitcnt vmcnt(0)
    {e}:
    s_barrier""")
def xws(a): a(f"s_mov_b32 s44, s4\n s_mov_b32 s45, s5\n s_mov_b32 s46, {256*MB}\n s_mov_b32 s47, 0x00020000")
def allsum(a, regs, t):
    for sh in (8, 4, 2, 1):
        for r in regs: a(f"v_add_f32_dpp v{r}, v{r}, v{r} row_ror:{sh} row_mask:0xf bank_mask:0xf")
    for op in ("16", "32"):
        for i, r in enumerate(regs): a(f"v_mov_b32 v{t+i}, v{r}")
        for i, r in enumerate(regs): a(f"v_permlane{op}_swap_b32 v{r}, v{t+i}")
        for i, r in enumerate(regs): a(f"v_add_f32 v{r}, v{r}, v{t+i}")
def unpack(a, d, s_, n):
    for i in range(n): a(f"v_lshlrev_b32 v{d+2*i}, 16, v{s_+i}\n v_and_b32 v{d+2*i+1}, 0xffff0000, v{s_+i}")
def layernorm(a):
    srd(a, 44, 0, 4*MB); srd(a, 8, 96, 2048)
    a(f"""s_lshl_b32 s30, s62, 4
    s_lshl_b32 s31, s14, 2
    s_add_u32 s30, s30, s31
    s_lshl_b32 s31, s30, 11
    v_lshlrev_b32 v2, 4, v1
    v_add_u32 v3, 4096, v2
    s_waitcnt lgkmcnt(0)""")
    for r in range(4):
        for h in range(2): a(f"buffer_load_dwordx4 {vr(32+8*r+4*h)}, v{2+r//2}, s[44:47], s31 offen offset:{(r&1)*2048+h*1024}")
    for h in range(2): a(f"buffer_load_dwordx4 {vr(64+4*h)}, v2, s[8:11], 0 offen offset:{h*1024}")
    a("s_waitcnt vmcnt(0)")
    unpack(a, 72, 64, 8)
    for r in range(4):
        X = 96+16*r; unpack(a, X, 32+8*r, 8)
        a(f"v_add_f32 v{160+r}, v{X}, v{X+1}\n v_mul_f32 v{164+r}, v{X}, v72")
        for k in range(1, 16):
            if k > 1: a(f"v_add_f32 v{160+r}, v{160+r}, v{X+k}")
            a(f"v_fmac_f32 v{164+r}, v{X+k}, v{72+k}")
    a("s_nop 1"); allsum(a, range(160, 168), 176)
    for r in range(4):
        X = 96+16*r
        a(f"v_mul_f32 v{160+r}, {f2u(1/1024)}, v{160+r}")
        for k in range(16):
            a(f"v_sub_f32 v{X+k}, v{X+k}, v{160+r}")
            a(f"v_mul_f32 v{168+r}, v{X}, v{X}" if k == 0 else f"v_fmac_f32 v{168+r}, v{X+k}, v{X+k}")
    a("s_nop 1"); allsum(a, range(168, 172), 176)
    a(f"v_mov_b32 v176, {f2u(1e-5)}\n s_add_u32 s31, s31, {YY}")
    for r in range(4): a(f"v_fmamk_f32 v{168+r}, v{168+r}, {f2u(1/1024)}, v176\n v_mul_f32 v{164+r}, {f2u(-math.log2(math.e))}, v{164+r}")
    for r in range(4): a(f"v_rsq_f32 v{168+r}, v{168+r}\n v_exp_f32 v{164+r}, v{164+r}")
    a("s_nop 0")
    for r in range(4): a(f"v_add_f32 v{164+r}, 1.0, v{164+r}")
    for r in range(4): a(f"v_rcp_f32 v{164+r}, v{164+r}")
    for r in range(4):
        X = 96+16*r
        for k in range(16): a(f"v_mul_f32 v{X+k}, v{X+k}, v{168+r}")
        for k in range(8): a(f"v_cvt_pk_bf16_f32 v{32+8*r+k}, v{X+2*k}, v{X+2*k+1}")
        for h in range(2): a(f"buffer_store_dwordx4 {vr(32+8*r+4*h)}, v{2+r//2}, s[4:7], s31 offen offset:{(r&1)*2048+h*1024} sc1")
    a(f"""s_lshl_b32 s30, s30, 2
    s_add_u32 s30, s30, {GG}
    s_mov_b64 exec, 1
    buffer_store_dwordx4 v[164:167], v2, s[4:7], s30 offen sc1
    s_mov_b64 exec, -1""")
def kv(a, T, NS, isv):
    g = G(T, T, NS, 2048, 8192, 1024, swap=isv)
    srd(a, 44, 0, 4*MB); srd(a, 48, 32 if isv else 24, 8*MB)
    a("s_lshl_b32 s52, s36, 11\n s_lshl_b32 s53, s37, 1")
    g.setup(a); g.prologue(a); g.main(a)
    if isv:
        a(f"s_lshl_b32 s63, s36, 13\n s_lshl_b32 s58, s37, 6\n s_add_u32 s63, s63, s58\n s_add_u32 s63, s63, {VT}")
        g.store_vt(a, 63, "sc1")
    else:
        a(f"s_lshl_b32 s63, s36, 13\n s_lshl_b32 s58, s37, 1\n s_add_u32 s63, s63, s58\n s_add_u32 s63, s63, {KX}")
        g.store_rows(a, 8192, 63, "s[4:7]", "sc1")
def gelu(a, T, mt, p):
    U = T + 16
    pk = lambda op, d, *s_: a(f"v_pk_{op}_f32 {vr(d,2)}, " + ", ".join(vr(x,2) for x in s_))
    for i in range(0, 8, 2): pk("mul", U+i, T+i, T+i)
    for i in range(0, 8, 2): pk("fma", U+i, U+i, 224, 226)
    for i in range(0, 8, 2): pk("mul", U+i, U+i, T+i)
    for i in range(8): a(f"v_exp_f32 v{U+i}, v{U+i}")
    for i in range(0, 8, 2): pk("add", U+i, U+i, 228)
    for i in range(8): a(f"v_rcp_f32 v{U+i}, v{U+i}")
    for i in range(0, 8, 2): pk("mul", T+i, T+i, U+i)
def g2(a):
    g = G(256, 256, 2, 2048, 7168, 1024, xsc="sc1")
    xws(a); srd(a, 48, 64, 7168*1024)
    a(f"s_lshl_b32 s52, s60, 19\n s_add_u32 s52, s52, {YY}\n s_lshl_b32 s53, s61, 9\n s_mov_b32 s37, s53")
    g.setup(a); g.prologue(a, lambda: g.bias(a, 72, 7168, 37)); g.main(a, g.bias2(a))
    c1 = 2*math.sqrt(2/math.pi)*math.log2(math.e)
    for i, c in enumerate((-c1*0.044715, -c1, 1.0)): a(f"v_mov_b32 v{224+2*i}, {f2u(c)}\n v_mov_b32 v{225+2*i}, {f2u(c)}")
    a(f"s_mul_i32 s63, s60, {256*7168}\n s_add_u32 s63, s63, s37\n s_add_u32 s63, s63, {HH}")
    g.store_rows(a, 7168, 63, "s[4:7]", "sc1", gelu)
def tile128(a):
    a("s_and_b32 s36, s61, 1\n s_lshl_b32 s36, s36, 7\n s_lshl_b32 s37, s60, 8\n s_add_u32 s36, s36, s37\n s_lshr_b32 s37, s61, 1\n s_lshl_b32 s37, s37, 8")
def g3(a):
    g = G(128, 128, 4, 7168, 2048, 3584, xsc="sc1")
    xws(a); srd(a, 48, 80, 7168*1024); tile128(a)
    a(f"s_mul_i32 s52, s36, 7168\n s_add_u32 s52, s52, {HH}\n s_mov_b32 s53, s37")
    g.setup(a); g.prologue(a, lambda: g.bias(a, 88, 2048, 37)); g.main(a, g.bias2(a))
    a(f"s_lshl_b32 s63, s36, 11\n s_add_u32 s63, s63, s37\n s_add_u32 s63, s63, {BB}")
    g.store_rows(a, 2048, 63, "s[4:7]", "sc1")
def wo(a, T, NS):
    g = G(T, T, NS, 8192, 2048, 4096, xsc="sc1")
    xws(a); srd(a, 48, 40, 8*MB); srd(a, 8, 104, 4*MB)
    a(f"s_lshl_b32 s52, s36, 13\n s_add_u32 s52, s52, {OX}\n s_mov_b32 s53, s37\n s_lshl_b32 s63, s36, 11\n s_add_u32 s63, s63, s37")
    g.setup(a)
    def pre():
        g.rowaddr(a, 30, 2048)
        a(f"""s_mul_i32 s58, s56, {T//2}
        s_add_u32 s58, s58, s36
        s_lshl_b32 s58, s58, 2
        s_add_u32 s58, s58, {GG}
        v_lshlrev_b32 v31, 2, v28
        s_add_u32 s59, s63, {BB}""")
        for mt in range(g.MT):
            a(f"buffer_load_dword v{224+mt}, v31, s[4:7], s58 offen offset:{mt*64} sc1")
            for p in range(g.NT//2): a(f"buffer_load_dwordx4 {vr(192+4*(mt*g.NT//2+p))}, v30, s[4:7], s59 offen offset:{p*64} sc1")
            a(f"s_add_u32 s59, s59, {16*2048}")
    g.prologue(a, pre); g.main(a); k = 0
    for mt in range(g.MT):
        for p in range(g.NT//2):
            T_ = 32 + 8*(k % 2); U = T_+16; D = 64 + 4*k
            g.rd8(a, T_, g.acc(mt, 2*p), g.acc(mt, 2*p+1))
            unpack(a, U, 192+4*k, 4); k += 1
            for v in range(4): a(f"v_permlane16_swap_b32 v{T_+v}, v{T_+4+v}")
            for v in range(8): a(f"v_sub_f32 v{T_+v}, v{T_+v}, v{U+v}")
            for v in range(8): a(f"v_fmac_f32 v{U+v}, v{T_+v}, v{224+mt}")
            for v in range(4): a(f"v_cvt_pk_bf16_f32 v{D+v}, v{U+2*v}, v{U+2*v+1}")
            a(f"buffer_store_dwordx4 {vr(D)}, v30, s[8:11], s63 offen offset:{p*64}")
        a(f"s_add_u32 s63, s63, {16*2048}")
def qattn(a):
    g = G(256, 256, 2, 2048, 8192, 1024)
    srd(a, 44, 0, 4*MB); srd(a, 48, 16, 8*MB)
    a("s_lshl_b32 s52, s60, 19\n s_lshl_b32 s53, s61, 9")
    g.setup(a); g.prologue(a); g.main(a)
    wstamp(a, 7)
    wait(a, C_KV, "s60", 128); wait(a, 36, "0", 128)
    g.coff(a, 30)
    a(f"""s_lshl_b32 s36, s61, 1
    s_add_u32 s36, s36, s57
    s_lshl_b32 s37, s60, 3
    s_lshl_b32 s58, s56, 2
    s_add_u32 s37, s37, s58
    v_lshrrev_b32 v2, 2, v28
    v_and_b32 v3, 3, v28
    v_lshl_add_u32 v3, v2, 3, v3
    v_lshl_add_u32 v240, v3, 13, v30
    v_add_u32 v241, 32768, v240
    v_and_b32 v4, 1, v28
    v_lshl_add_u32 v4, v2, 1, v4
    v_lshl_add_u32 v242, v4, 13, v30
    v_lshlrev_b32 v4, 4, v29
    v_lshl_add_u32 v243, v3, 6, v4
    v_add_u32 v244, 4096, v243
    v_lshrrev_b32 v245, 2, v243
    v_lshl_add_u32 v246, v28, 13, v4
    v_add_u32 v247, {16*8192}, v246
    v_mov_b32 v249, {f2u(-1e9*math.sqrt(128))}
    v_lshlrev_b32 v4, 3, v29
    v_sub_u32 v4, v28, v4
    s_lshl_b32 s58, s37, 18
    s_lshl_b32 s59, s36, 8
    s_add_u32 s30, s58, s59
    s_add_u32 s34, s30, {OX}
    s_add_u32 s30, s30, {KX}
    s_lshl_b32 s63, s36, 13
    s_add_u32 s32, s58, s63
    s_lshr_b32 s33, s32, 2
    s_add_u32 s32, s32, {VT}
    s_add_u32 s33, s33, {VM}
    s_lshl_b32 s31, s37, 16
    s_add_u32 s31, s31, s59
    s_add_u32 s31, s31, {KM}
    s_lshl_b32 s35, s36, 7
    s_add_u32 s35, s35, {PROG}
    v_mov_b32 v248, 0
    v_mov_b32 v229, 0
    s_mov_b32 s21, {SCALE}""")
    for i in range(4): a(f"v_mov_b32 v{236+i}, 0x3f803f80")
    for i in range(8): a(f"v_mov_b32 v{145+2*i}, 0")
    for qt in range(2):
        for k in range(8): a(f"v_cmp_le_i32 s[{64+2*(8*qt+k)}:{65+2*(8*qt+k)}], {k-16*qt}, v4")
    mf = lambda d, x, y, c: a(f"v_mfma_f32_16x16x32_bf16 {vr(d)}, {vr(x)}, {vr(y)}, {vr(d) if c else 0}")
    mf16 = lambda d, x, y: a(f"v_mfma_f32_16x16x16_bf16 {vr(d)}, {vr(x,2)}, {vr(y,2)}, {vr(d)}")
    for q in range(4):
        for t in range(2):
            for p in range(4): a(f"buffer_load_dwordx4 {vr(64+16*t+4*p)}, v{240+t}, s[4:7], s30 offen offset:{p*64} sc1")
        for e in range(8): a(f"buffer_load_dwordx4 {vr(112+4*e)}, v{243+e//4}, s[4:7], s32 offen offset:{((e>>1)&1)*2048+(e&1)*256} sc1")
        for qt in range(2):
            for p in range(4):
                g.rd8(a, 184, g.acc(2*q+qt, 2*p), g.acc(2*q+qt, 2*p+1)); g.pack(a, 32+16*qt+4*p, 184)
        l = a.lab("pg")
        a(f"""{l}:
        s_sub_u32 s23, s23, 1
        s_cbranch_scc1 rec_exit
        buffer_load_dwordx4 v[184:187], v248, s[4:7], s35 offen sc1
        s_waitcnt vmcnt(0)
        v_min3_u32 v184, v184, v185, v186
        v_min_u32 v184, v184, v187
        v_cmp_ge_u32 vcc, s37, v184
        s_cbranch_vccz {l}_ok
        s_sleep 8
        s_branch {l}
        {l}_ok:""")
        for p in range(4): a(f"buffer_load_dwordx4 {vr(96+4*p)}, v242, s[4:7], s31 offen offset:{p*64} sc1")
        for e in range(8): a(f"buffer_load_dword v{144+2*e}, v245, s[4:7], s33 offen offset:{(e>>1)*512+(e&1)*64} sc1")
        for p in range(4):
            for qt in range(2):
                for t in range(2): mf(160+12*qt+4*t, 64+16*t+4*p, 32+16*qt+4*p, p)
        a("s_waitcnt vmcnt(8)")
        for p in range(4):
            for qt in range(2): mf(168+12*qt, 96+4*p, 32+16*qt+4*p, p)
        for qt in range(2):
            S = 160+12*qt
            for k in range(8): a(f"v_cndmask_b32 v{S+k}, v249, v{S+k}, s[{64+2*(8*qt+k)}:{65+2*(8*qt+k)}]")
            a(f"""v_max3_f32 v188, v{S}, v{S+1}, v{S+2}
            v_max3_f32 v189, v{S+3}, v{S+4}, v{S+5}
            v_max3_f32 v188, v{S+6}, v{S+7}, v188
            v_max3_f32 v189, v{S+8}, v{S+9}, v189
            v_max_f32 v188, v188, v189""")
            for op in ("16", "32"): a(f"v_mov_b32 v189, v188\n s_nop 1\n v_permlane{op}_swap_b32 v188, v189\n s_nop 0\n v_max_f32 v188, v188, v189")
            a("v_mul_f32 v188, s21, v188")
            for k in range(10): a(f"v_fma_f32 v{S+k}, v{S+k}, s21, -v188")
            for k in range(10): a(f"v_exp_f32 v{S+k}, v{S+k}")
            for k in range(5): a(f"v_cvt_pk_bf16_f32 v{224+k}, v{S+2*k}, v{S+2*k+1}")
            a("s_waitcnt vmcnt(0)\n s_nop 0" if qt == 0 else "s_nop 1")
            mf(232, 236, 224, 0)
            for e in range(8): mf(192+4*e, 112+4*e, 224, 0)
            mf16(232, 236, 228)
            for e in range(8): mf16(192+4*e, 144+2*e, 228)
            a("v_rcp_f32 v232, v232\n s_nop 0")
            for Pp in range(4):
                D = (252, 184)[Pp & 1]
                for i in range(4): a(f"v_pk_mul_f32 {vr(192+8*Pp+2*i,2)}, {vr(192+8*Pp+2*i,2)}, v[232:233] op_sel_hi:[1,0]")
                for i in range(4): a(f"v_cvt_pk_bf16_f32 v{D+i}, v{192+8*Pp+2*i}, v{193+8*Pp+2*i}")
                a(f"buffer_store_dwordx4 {vr(D)}, v{246+qt}, s[4:7], s34 offen offset:{Pp*64} sc1")
        a("""s_add_u32 s30, s30, 262144
        s_add_u32 s32, s32, 262144
        s_add_u32 s34, s34, 262144
        s_add_u32 s31, s31, 65536
        s_add_u32 s33, s33, 65536
        s_add_u32 s37, s37, 1""")
def worker(a):
    a("""worker:
    s_sub_u32 s62, s3, 128
    s_lshr_b32 s60, s62, 4
    s_and_b32 s61, s62, 15
    s_mov_b32 s23, 0x40000
    s_mov_b32 s39, 0""")
    wstamp(a, 0)
    a("""mini:
    s_and_b32 s36, s62, 1
    s_lshl_b32 s36, s36, 7
    s_lshl_b32 s37, s39, 8
    s_add_u32 s36, s36, s37
    s_bfe_u32 s37, s62, 0x50001
    s_lshl_b32 s37, s37, 7
    s_cmp_ge_u32 s62, 64
    s_cbranch_scc1 miniv""")
    kv(a, 128, 4, False); a("s_branch minie\n miniv:"); kv(a, 128, 4, True); a("minie:")
    signal(a, C_KV, "s39", 1)
    a("s_add_u32 s39, s39, 1\n s_cmp_lt_u32 s39, 2\n s_cbranch_scc1 mini")
    wstamp(a, 1)
    layernorm(a); signal(a, C_Y, "s60", 1)
    wstamp(a, 2)
    a("s_cmp_lt_u32 s60, 2\n s_cbranch_scc1 nok\n s_lshl_b32 s36, s60, 8\n s_lshl_b32 s37, s61, 8")
    kv(a, 256, 2, False); signal(a, C_KV, "s60", 4)
    a("nok:"); wstamp(a, 3)
    a("""s_lshr_b32 s58, s60, 1
    s_cmp_eq_u32 s58, 1
    s_cbranch_scc1 nov
    s_add_u32 s39, s60, 2
    s_cmp_lt_u32 s60, 2
    s_cselect_b32 s39, s39, s60
    s_lshl_b32 s36, s39, 8
    s_lshl_b32 s37, s61, 8""")
    kv(a, 256, 2, True); signal(a, C_KV, "s39", 4)
    a("nov:"); wstamp(a, 4)
    wait(a, C_Y, "s60", 16)
    a("s_cmp_ge_u32 s61, 14\n s_cbranch_scc1 nog2")
    g2(a); signal(a, C_H, "s60", 1)
    a("nog2:"); wstamp(a, 5)
    wait(a, C_H, "s60", 14); g3(a); wstamp(a, 6)
    qattn(a); wstamp(a, 8)
    a(f"s_cmp_ge_u32 s60, {NWO}\n s_cbranch_scc1 rec_exit")
    signal(a, C_O, "s60", 1); wait(a, C_O, "s60", 16); wstamp(a, 9)
    tile128(a); wo(a, 128, 4); wstamp(a, 10)
    a("s_branch rec_exit")
def tail(a):
    n = (8-NWO)*64
    srd(a, 4, 120, 256*MB)
    a(f"""s_cmp_ge_u32 s2, {n}
    s_cbranch_scc1 tail_exit
    v_and_b32 v1, 63, v0
    v_lshrrev_b32 v2, 6, v0
    s_nop 0
    v_readfirstlane_b32 s14, v2
    s_lshr_b32 s36, s2, 4
    s_lshl_b32 s36, s36, 6
    s_add_u32 s36, s36, {NWO*256}
    s_and_b32 s37, s2, 7
    s_lshl_b32 s37, s37, 1
    s_bfe_u32 s58, s2, 0x10003
    s_add_u32 s37, s37, s58
    s_lshl_b32 s37, s37, 7
    s_waitcnt lgkmcnt(0)""")
    wo(a, 64, 8)
    a("tail_exit:\n s_waitcnt vmcnt(0)\n s_endpgm")
    return n
```

```python
import sys
from asm import *
import rec, work
NAME = "gated_mix__memory_aug_recurrent_mem_tr__mixer_channel_mlp__prompt"
def gen():
    ref = open(f"cdna_kernels/{NAME}.s.ref").read()
    head = ref[:ref.index("; @launch")]
    a = A(); rec.roles(a); a("s_cmp_ge_u32 s3, 128\n s_cbranch_scc1 worker"); rec.rec(a); work.worker(a)
    b = A(); b.n = 100000; n = work.tail(b)
    return (head + f"; @launch kernel={NAME}_kernel grid=(256,1,1) block=(256,1,1) lds=160000\n"
        + f"; @launch kernel=tail_kernel grid=({n},1,1) block=(256,1,1) lds=131072\n"
        + '.amdgcn_target "amdgcn-amd-amdhsa--gfx950"\n.text\n' + khead(NAME+"_kernel") + a.text() + khead("tail_kernel") + b.text()
        + '.section .rodata,"a"\n' + kdesc(NAME+"_kernel", 512, 256) + kdesc("tail_kernel", 512, 256))
if __name__ == "__main__":
    out = sys.argv[1] if len(sys.argv) > 1 else f"cdna_kernels/{NAME}.s"
    if len(sys.argv) > 2:
        c = eval(sys.argv[2]); rec.P.update(c); work.W.update(c)
    open(out, "w").write(gen())
```
